```python
import torch

def _softmax(x, axis=-1):
    return torch.softmax(x, dim=axis)
def _gelu(x):
    return torch.nn.functional.gelu(x, approximate="tanh")
def _silu(x):
    return torch.nn.functional.silu(x)
def _sigmoid(x):
    return torch.sigmoid(x)
def _layernorm(x, axis=-1, eps=1e-5):
    m = x.mean(dim=axis, keepdim=True)
    v = x.var(dim=axis, keepdim=True, unbiased=False)
    return (x - m) / torch.sqrt(v + eps)
def _scatter_add(tgt, idx, src, axis=0):
    return tgt.clone().index_add_(axis, idx, src)
def _segment_sum(src, seg, n):
    out = torch.zeros((n,) + src.shape[1:], dtype=src.dtype)
    return out.index_add_(0, seg, src)
def _pad(x, pw):
    flat = tuple(v for pair in reversed(pw) for v in pair)
    return torch.nn.functional.pad(x, flat)

kernel_name = 'concat_heads__sliding_local_dilated__sliding_block__prompt'

def setup_inputs():

    _w = (lambda a: (lambda t: t.to(torch.bfloat16) if t.is_floating_point() else t)(torch.as_tensor(a)))
    def _A_setup():
        B, S, D = 1, 2048, 512
        return {
            "x": _w((lambda *s: torch.randn(*s, dtype=torch.bfloat16) * 0.2)(B, S, D)),
            "wqkv": _w((lambda *s: torch.randn(*s, dtype=torch.bfloat16) * 0.2)(D, 3 * D)),
            "wo": _w((lambda *s: torch.randn(*s, dtype=torch.bfloat16) * 0.05)(D, D)),
        }
    _A_in = _A_setup()

    def _B_setup():
        B, S, D = 1, 2048, 512
        return {
            "x": _w((lambda *s: torch.randn(*s, dtype=torch.bfloat16) * 0.2)(B, S, D)),
            "wqkv": _w((lambda *s: torch.randn(*s, dtype=torch.bfloat16) * 0.2)(D, 3 * D)),
            "wo": _w((lambda *s: torch.randn(*s, dtype=torch.bfloat16) * 0.05)(D, D)),
        }
    _B_in = _B_setup()

    return {
        "A_x": _A_in["x"],
        "A_wqkv": _A_in["wqkv"],
        "A_wo": _A_in["wo"],
        "B_x": _B_in["x"],
        "B_wqkv": _B_in["wqkv"],
        "B_wo": _B_in["wo"],
    }

def reference(A_x, A_wqkv, A_wo, B_x, B_wqkv, B_wo):
    def _A_ref(x, wqkv, wo):
        B, S, D = x.shape
        H = 32; Dh = D // H
        W, dil = 8, 2
        qkv = (lambda x, *d: x.permute(*d))((x @ wqkv).reshape(B, S, 3, H, Dh), 2, 0, 3, 1, 4)
        q, k, v = qkv[0], qkv[1], qkv[2]
        scale = Dh ** -0.5
        pos = torch.arange(S)
        off = torch.arange(W) * dil
        idx = pos[:, None] - off[None, :]
        mask = idx >= 0
        idx_c = torch.where(mask, idx, 0).reshape(-1)
        kg = k[:, :, idx_c, :].reshape(B, H, S, W, Dh)
        vg = v[:, :, idx_c, :].reshape(B, H, S, W, Dh)
        logits = torch.einsum("bhsd,bhswd->bhsw", q, kg) * scale
        logits = torch.where(mask[None, None, :, :], logits, -1e9)
        attn = _softmax(logits, axis=-1)
        o = torch.einsum("bhsw,bhswd->bhsd", attn, vg)
        return (lambda x, *d: x.permute(*d))(o, 0, 2, 1, 3).reshape(B, S, D) @ wo

    def _B_ref(x, wqkv, wo):
        B, S, D = x.shape
        H = 32; Dh = D // H; W = 256
        qkv = (lambda x, *d: x.permute(*d))((x @ wqkv).reshape(B, S, 3, H, Dh), 2, 0, 3, 1, 4)
        q, k, v = qkv[0], qkv[1], qkv[2]
        scores = torch.einsum("bhqd,bhkd->bhqk", q, k) * (Dh ** -0.5)
        idx = torch.arange(S)
        mask = (idx[:, None] - idx[None, :] >= 0) & (idx[:, None] - idx[None, :] < W)
        scores = torch.where(mask[None, None], scores, -1e9)
        p = _softmax(scores, axis=-1)
        o = torch.einsum("bhqk,bhkd->bhqd", p, v)
        return (lambda x, *d: x.permute(*d))(o, 0, 2, 1, 3).reshape(B, S, D) @ wo

    a = _A_ref(A_x, A_wqkv, A_wo)
    b = _B_ref(B_x, B_wqkv, B_wo)
    return torch.concatenate([a, b], axis=-1)
```

```python
class Asm:
    def __init__(self):
        self.lines = []
        self.nlabel = 0
    def __call__(self, s):
        for l in s.strip("\n").split("\n"):
            self.lines.append(l)
    def label(self, p="L"):
        self.nlabel += 1
        return f"{p}_{self.nlabel}"
    def text(self):
        return "\n".join(self.lines) + "\n"

def kernel_head(name):
    return f""".text
.globl {name}
.p2align 8
.type {name},@function
{name}:
"""
def kernel_desc(name, vgpr=256, sgpr=102, accum=None):
    if accum is None:
        accum = min(256, (vgpr + 3) // 4 * 4)
    return f""".section .rodata,"a"
.p2align 6
.amdhsa_kernel {name}
  .amdhsa_next_free_vgpr {vgpr}
  .amdhsa_next_free_sgpr {sgpr}
  .amdhsa_accum_offset {accum}
  .amdhsa_group_segment_fixed_size 0
  .amdhsa_kernarg_size 72
  .amdhsa_user_sgpr_count 2
  .amdhsa_user_sgpr_kernarg_segment_ptr 1
  .amdhsa_system_sgpr_workgroup_id_x 1
.end_amdhsa_kernel
"""
TARGET = '.amdgcn_target "amdgcn-amd-amdhsa--gfx950"\n'
```

```python
import re, sys

REG = re.compile(r"\b([vsa])(\d+)\b|\b([vsa])\[(\d+):(\d+)\]|\b(vcc|exec|m0|scc)(?:_lo|_hi)?\b")
def regs(tok):
    out = set()
    for m in REG.finditer(tok):
        if m.group(1): out.add((m.group(1), int(m.group(2))))
        elif m.group(3):
            for i in range(int(m.group(4)), int(m.group(5)) + 1): out.add((m.group(3), i))
        else: out.add((m.group(6), 0))
    return out

TRANS = ("v_exp_f32", "v_log_f32", "v_rcp_f32", "v_rsq_f32", "v_sqrt_f32", "v_sin_f32", "v_cos_f32")
class I:
    def __init__(s, text, line):
        s.text = text; s.line = line
        p = text.split(None, 1)
        s.op = p[0]
        ops = [x.strip() for x in re.split(r",(?![^\[]*\])", p[1])] if len(p) > 1 else []
        s.ops = ops
        op = s.op
        s.mfma = op.startswith("v_mfma")
        s.valu = op.startswith("v_") and not s.mfma
        s.salu = op.startswith("s_")
        s.ds = op.startswith("ds_")
        s.vmem = op.startswith("buffer_") or op.startswith("global_")
        s.trans = any(op.startswith(t) for t in TRANS)
        s.w = set(); s.r = set()
        s.states = 1
        if op == "s_nop": s.states = int(ops[0], 0) + 1
        if s.mfma:
            s.w = regs(ops[0]); s.A = regs(ops[1]); s.B = regs(ops[2]); s.C = regs(ops[3]); s.r = s.A | s.B | s.C
            s.passes = 8 if "32x32x16" in op else 4
        elif s.valu:
            if op.startswith("v_cmp"):
                s.w = regs(ops[0]); s.r = set().union(*[regs(o) for o in ops[1:]])
                if op.startswith("v_cmpx"): s.w |= {("exec", 0)}
            elif op.startswith("v_permlane"):
                s.w = regs(ops[0]) | regs(ops[1]); s.r = set(s.w)
            elif "_co_" in op:
                s.w = regs(ops[0]) | regs(ops[1]); s.r = set().union(*[regs(o) for o in ops[2:]])
            elif op == "v_nop":
                pass
            else:
                s.w = regs(ops[0]); s.r = set().union(*[regs(o) for o in ops[1:]]) if len(ops) > 1 else set()
                if op.startswith("v_fmac") or op.startswith("v_writelane"): s.r |= s.w
        elif s.ds:
            if op.startswith("ds_read") or op.startswith("ds_bpermute") or op.startswith("ds_swizzle"):
                s.w = regs(ops[0]); s.r = set().union(*[regs(o) for o in ops[1:]])
            else:
                s.r = set().union(*[regs(o) for o in ops])
        elif s.vmem:
            s.lds = bool(re.search(r"\blds\b", text))
            if "store" in op or "atomic" in op:
                s.r = set().union(*[regs(o) for o in ops])
                if op.startswith("buffer_"): s.data = regs(ops[0])
                else: s.data = regs(ops[1])
            elif op.startswith("buffer_inv") or op.startswith("buffer_wbl2"):
                pass
            elif s.lds:
                s.r = set().union(*[regs(o) for o in ops]) | {("m0", 0)}
            else:
                s.w = regs(ops[0]); s.r = set().union(*[regs(o) for o in ops[1:]])
        elif s.salu:
            if op.startswith("s_cmp") or op.startswith("s_cbranch") or op in ("s_branch", "s_barrier", "s_waitcnt", "s_nop", "s_sleep", "s_endpgm", "s_setprio", "s_bitcmp1_b32", "s_bitcmp0_b32"):
                s.r = set().union(*[regs(o) for o in ops]) if ops and not op.startswith("s_waitcnt") else set()
            else:
                s.w = regs(ops[0]); s.r = set().union(*[regs(o) for o in ops[1:]]) if len(ops) > 1 else set()
                if "saveexec" in op: s.w |= {("exec", 0)}

def vg(x): return {r for r in x if r[0] in "va"}
def sg(x): return {r for r in x if r[0] == "s" or r[0] == "vcc"}

def need(p, c):
    n = 0; why = ""
    def up(k, w):
        nonlocal n, why
        if k > n: n, why = k, w
    if p.valu and c.mfma and vg(p.w) & c.r: up(2, "valu->mfma")
    if p.mfma:
        big = {8: 12, 4: 8}[p.passes]
        if c.mfma:
            if p.w & (c.A | c.B): up(big, "mfma D->A/B")
            if p.w & c.C and (p.w != c.C or p.passes != c.passes): up({8: 10, 4: 6}[p.passes], "mfma D->C partial")
            if p.w & c.w and p.w != c.w: up(big, "mfma D->D partial")
        elif c.valu:
            if p.w & (c.r | c.w): up(big, "mfma D->valu")
            if vg(p.C) & c.w: up({8: 7, 4: 3}[p.passes], "mfma C WAR")
        elif c.ds or c.vmem:
            if p.w & (c.r | c.w): up(big, "mfma D->mem")
    if p.valu:
        if p.trans and c.valu and not c.trans and vg(p.w) & c.r: up(1, "trans->valu")
        if p.trans and c.mfma and vg(p.w) & c.r: up(2, "trans->mfma")
        if c.op.startswith("v_permlane") and vg(p.w) & c.r: up(2, "valu->permlane")
        if (c.op.startswith("v_readfirstlane") or c.op.startswith("v_readlane")) and vg(p.w) & c.r: up(1, "valu->readlane")
        if c.vmem and sg(p.w) & c.r: up(5, "valu sgpr->vmem")
        if c.valu and sg(p.w) & c.r: up(2, "valu sgpr->valu")
        if c.salu and sg(p.w) & (c.r | ({("vcc", 0)} if "vcc" in c.op else set())): up(2, "valu sgpr->salu (pad)")
        if ("exec", 0) in p.w and c.mfma: up(4, "valu exec->mfma")
        if " dpp" in c.text or "row_" in c.text or "quad_perm" in c.text:
            if vg(p.w) & c.r: up(2, "valu->dpp")
    if p.salu and ("m0", 0) in p.w and c.vmem and getattr(c, "lds", False): up(1, "m0->lds dma")
    if p.vmem and hasattr(p, "data") and ("x4" in p.op or "x3" in p.op):
        if p.data & c.w: up(2 if (c.valu or c.mfma) else 1, "store data WAR")
    return n, why

def check(text, verbose=True):
    ins = []; labels = {}
    in_text = True
    for ln, raw in enumerate(text.split("\n"), 1):
        l = raw.split(";")[0].strip()
        if not l: continue
        if l.startswith(".section"): in_text = False
        if l.startswith(".text"): in_text = True
        if l.startswith(".") or not in_text: continue
        m = re.match(r"^([\w.$]+):\s*(.*)$", l)
        if m:
            labels[m.group(1)] = len(ins)
            l = m.group(2)
            if not l: continue
        ins.append(I(l, ln))
    def succ(i):
        x = ins[i]
        if x.op == "s_endpgm": return []
        if x.op == "s_branch": return [labels[x.ops[0]]]
        if x.op.startswith("s_cbranch"): return [i + 1, labels[x.ops[0]]]
        return [i + 1] if i + 1 < len(ins) else []
    errs = []
    for i, p in enumerate(ins):
        if not (p.valu or p.mfma or p.vmem or (p.salu and ("m0", 0) in p.w)): continue
        seen = {}
        st = [(j, 0) for j in succ(i)]
        while st:
            j, d = st.pop()
            if j >= len(ins) or d >= 20 or seen.get(j, 99) <= d: continue
            seen[j] = d
            n, why = need(p, ins[j])
            if n > d: errs.append((p.line, ins[j].line, why, n, d, p.text, ins[j].text))
            for k in succ(j): st.append((k, d + ins[j].states))
    errs = sorted(set(errs))
    if verbose:
        for e in errs: print("HAZARD line %d -> %d: %s need %d have %d\n    %s\n    %s" % e)
    return errs

if __name__ == "__main__":
    e = check(open(sys.argv[1]).read())
    print("hazards:", len(e))
```

```python
import sys
sys.path.insert(0, "tools")
from asmgen import *
import hazard

NAME = "concat_heads__sliding_local_dilated__sliding_block__prompt_kernel"
HEADER = open("concat_heads__sliding_local_dilated__sliding_block__prompt.s.ref").read().split("; Override launch")[0]

WS_K, WS_V, WS_OA, WS_OB = 0, 2 << 20, 4 << 20, 6 << 20
WS_FKV = 8 << 20
WS_FO = (8 << 20) + 16384
WS_EPOCH = (8 << 20) + 32768
WS_TS = 9 << 20
WS_SIZE = 10 << 20
STAGE = 45056
XOFF = 24576
LK, LV, LQ = 0, 49152, 98304
LDS_BYTES = 3 * STAGE
QSCALE = 0.25 * 1.4426950408889634

def f32bits(x):
    import struct
    return struct.unpack("<I", struct.pack("<f", x))[0]
def v(a, n=1): return f"v{a}" if n == 1 else f"v[{a}:{a+n-1}]"
def s(a, n=1): return f"s{a}" if n == 1 else f"s[{a}:{a+n-1}]"
MFMA = "v_mfma_f32_32x32x16_bf16"

sW, sBR, sRB, sHG, sROT, sXCD, sIDX = 3, 4, 5, 6, 7, 8, 9
SX, SWQ, SWS, SOUT, SWO, SDBG = 32, 36, 40, 44, 48, 52
sVM = 72
sTO = 74
vL = 1
M1, M2 = 224, 240
vN = 220
vJ = 218

def gen(diag=False):
    a = Asm()
    a(HEADER.rstrip("\n"))
    a(f"; @launch grid=(256,1,1) block=(512,1,1) lds={LDS_BYTES}")
    a(TARGET); a(kernel_head(NAME))
    nts = [0]
    def TS(k):
        if diag:
            a(f"s_memtime s[{80+2*k}:{81+2*k}]\n s_waitcnt lgkmcnt(0)")
    def mfma(d, A, B, C):
        c = "0" if C is None else v(C, 16)
        a(f"{MFMA} {v(d,16)}, {v(A,4)}, {v(B,4)}, {c}")

    def masks():
        a(f"""
        v_and_b32 v2, 31, v{vL}
        v_lshrrev_b32 v3, 5, v{vL}
        v_lshlrev_b32 v3, 2, v3
        v_sub_u32 v2, v2, v3                 ; d = q - 4h
        s_cmp_eq_u32 s{sBR}, 0
        s_cselect_b32 s56, 0xfffffff1, 0x80000000
        s_cselect_b32 s57, 0, -1
        s_cselect_b32 s58, 32, 0
        s_mov_b32 s59, {f32bits(-1e20):#x}
        v_mov_b32 v3, s58
        """)
        for r in range(16):
            c = (r & 3) + 8 * (r >> 2)
            a(f"""
            v_subrev_u32 v{M2+r}, {c}, v2
            v_and_b32 v{M1+r}, s56, v{M2+r}
            v_xad_u32 v{M2+r}, v{M2+r}, s57, v3
            v_cvt_f32_u32 v{M1+r}, v{M1+r}
            v_and_b32 v{M2+r}, s56, v{M2+r}
            v_mul_f32 v{M1+r}, s59, v{M1+r}
            v_cvt_f32_u32 v{M2+r}, v{M2+r}
            v_mul_f32 v{M2+r}, s59, v{M2+r}
            """)

    def poll(voff, lbl):
        a(f"""
        s_mov_b32 s{sTO}, 0x200000
{lbl}:
        buffer_load_dwordx2 v[2:3], v{voff}, {s(SWS,4)}, 0 offen sc1
        s_waitcnt vmcnt(0)
        v_cmp_ne_u64 vcc, v[2:3], v[{vN}:{vN+1}]
        s_nop 4
        s_cmp_eq_u64 vcc, 0
        s_cbranch_scc1 {lbl}_done
        s_sleep 1
        s_sub_u32 s{sTO}, s{sTO}, 1
        s_cmp_lg_u32 s{sTO}, 0
        s_cbranch_scc1 {lbl}
{lbl}_done:
        """)

    def setflag(soff_reg):
        a(f"""
        v_mov_b32 v2, 0
        s_mov_b64 exec, 1
        buffer_store_dwordx2 v[{vN}:{vN+1}], v2, {s(SWS,4)}, s{soff_reg} offen sc1
        s_mov_b64 exec, -1
        """)

    if diag: a("s_memrealtime s[78:79]\n s_memtime s[80:81]")
    a(f"""
    s_cmp_ge_u32 s2, 256
    s_cbranch_scc1 L_end
    s_load_dwordx16 s[16:31], s[0:1], 0
    s_load_dwordx2 s[{SWS}:{SWS+1}], s[0:1], 64
    v_lshrrev_b32 v2, 6, v0
    v_and_b32 v{vL}, 63, v0
    v_readfirstlane_b32 s{sW}, v2
    s_and_b32 s{sXCD}, s2, 7
    s_lshr_b32 s{sIDX}, s2, 3
    s_and_b32 s{sBR}, s{sXCD}, 1
    s_and_b32 s56, s{sIDX}, 7
    s_lshr_b32 s57, s{sIDX}, 3
    s_lshl_b32 s{sROT}, s57, 1
    s_add_u32 s{sROT}, s{sROT}, s56
    s_lshl_b32 s{sRB}, s{sXCD}, 2
    s_and_b32 s{sRB}, s{sRB}, 8
    s_add_u32 s{sRB}, s{sRB}, s56
    s_and_b32 s{sHG}, s{sXCD}, 4
    s_add_u32 s{sHG}, s{sHG}, s57
    s_mov_b32 s{SX+2}, {2048*1024}
    s_mov_b32 s{SX+3}, 0x20000
    s_mov_b32 s{SWQ+2}, {512*3072}
    s_mov_b32 s{SWQ+3}, 0x20000
    s_mov_b32 s{SWS+2}, {WS_SIZE}
    s_mov_b32 s{SWS+3}, 0x20000
    s_cmp_ge_u32 s{sW}, 4
    s_cbranch_scc0 L_compute
    """)
    def other_srds():
        a(f"""
        s_mov_b32 s{SOUT}, s28
        s_mov_b32 s{SOUT+1}, s29
        s_mov_b32 s{SOUT+2}, {2048*2048}
        s_mov_b32 s{SOUT+3}, 0x20000
        s_mov_b32 s{SDBG}, s30
        s_mov_b32 s{SDBG+1}, s31
        s_mov_b32 s{SDBG+2}, 256
        s_mov_b32 s{SDBG+3}, 0x20000
        s_mov_b32 s{sVM}, 0xffff
        s_mov_b32 s{sVM+1}, 0xffff
        """)
    vX, vXH, vWW = 4, 5, 6
    sLW, sXB, sWB, sHB, sKC, sBUF, sCNT, sL, sSX, sSW, sT = 60, 61, 62, 63, 64, 65, 66, 67, 68, 69, 70
    a(f"""
    s_sub_u32 s{sLW}, s{sW}, 4
    v_lshrrev_b32 v7, 3, v{vL}
    v_and_b32 v8, 7, v{vL}                ; slot
    v_lshrrev_b32 v9, 4, v{vL}
    s_and_b32 s56, s{sLW}, 1
    s_lshl_b32 s56, s56, 2
    v_add_u32 v10, s56, v9
    v_xor_b32 v10, v10, v8
    v_lshlrev_b32 v10, 4, v10
    v_lshl_add_u32 v{vX}, v7, 10, v10
    s_lshl_b32 s56, s{sLW}, 1
    v_add_u32 v10, s56, v9
    v_and_b32 v10, 7, v10
    v_xor_b32 v10, v10, v8
    v_lshlrev_b32 v10, 4, v10
    v_lshl_add_u32 v{vXH}, v7, 10, v10
    v_and_b32 v9, 1, v9
    v_lshlrev_b32 v9, 2, v9
    v_xor_b32 v9, v9, v8
    v_lshlrev_b32 v9, 4, v9
    v_mul_u32_u24 v{vWW}, 3072, v7
    v_add_u32 v{vWW}, v{vWW}, v9
    s_lshl_b32 s{sXB}, s{sRB}, 17
    s_lshl_b32 s56, s{sLW}, 12
    s_add_u32 s{sHB}, s{sXB}, s56
    s_sub_u32 s{sHB}, s{sHB}, 16384
    s_lshl_b32 s56, s{sLW}, 13
    s_add_u32 s{sXB}, s{sXB}, s56
    s_mul_i32 s{sWB}, s{sLW}, {8*3072}
    s_lshl_b32 s56, s{sHG}, 7
    s_add_u32 s{sWB}, s{sWB}, s56
    s_cmp_lg_u32 s{sRB}, 0
    s_cbranch_scc1 L_ld_halo_ok
    s_mov_b32 s{sHB}, 0
    v_mov_b32 v{vXH}, 0x7fff0000
L_ld_halo_ok:
    s_and_b32 s{sKC}, s{sROT}, 7
    s_lshl_b32 s{sBUF}, s{sLW}, 10
    s_mov_b32 s{sCNT}, 0
    s_cmp_eq_u32 s{sBR}, 0
    s_waitcnt lgkmcnt(0)
    s_cselect_b32 s{SX}, s16, s22
    s_cselect_b32 s{SX+1}, s17, s23
    s_cselect_b32 s{SWQ}, s18, s24
    s_cselect_b32 s{SWQ+1}, s19, s25
    """)
    def issue(fl, tag):
        a(f"""
        s_lshl_b32 s{sT}, s{sKC}, 7
        s_add_u32 s{sSX}, s{sXB}, s{sT}
        """)
        for j in range(4):
            a(f"""
            s_add_u32 m0, s{sBUF}, {XOFF + j*4096}
            s_add_u32 s56, s{sSX}, {j*32768}
            buffer_load_dwordx4 v{vX}, {s(SX,4)}, s56 offen {fl} lds
            """)
        a(f"""
        s_cmp_lg_u32 s{sBR}, 0
        s_cbranch_scc1 L_nohalo_{tag}
        s_lshl_b32 s57, s{sLW}, 9
        s_sub_u32 s57, s{sBUF}, s57
        s_add_u32 m0, s57, {XOFF + 16384}
        s_add_u32 s56, s{sHB}, s{sT}
        s_mov_b32 exec_hi, 0
        buffer_load_dwordx4 v{vXH}, {s(SX,4)}, s56 offen {fl} lds
        s_mov_b32 exec_hi, -1
L_nohalo_{tag}:
        s_mul_i32 s{sSW}, s{sKC}, {64*3072}
        s_add_u32 s{sSW}, s{sSW}, s{sWB}
        """)
        for t in range(3):
            for jj in range(2):
                a(f"""
                s_add_u32 m0, s{sBUF}, {t*8192 + jj*4096}
                s_add_u32 s56, s{sSW}, {t*1024 + jj*32*3072}
                buffer_load_dwordx4 v{vWW}, {s(SWQ,4)}, s56 offen {fl} lds
                """)
        a(f"""
        s_add_u32 s{sKC}, s{sKC}, 1
        s_and_b32 s{sKC}, s{sKC}, 7
        s_add_u32 s{sBUF}, s{sBUF}, {STAGE}
        s_cmp_ge_u32 s{sBUF}, {3*STAGE}
        s_cselect_b32 s56, {3*STAGE}, 0
        s_sub_u32 s{sBUF}, s{sBUF}, s56
        s_add_u32 s{sCNT}, s{sCNT}, 1
        """)
    a("L_ld_pro:")
    issue("nt", "p")
    a(f"s_cmp_lt_u32 s{sCNT}, 2\n s_cbranch_scc1 L_ld_pro")
    TS(1)
    a("L_ld_loop:\n s_waitcnt vmcnt(10)\n s_barrier")
    issue("", "m")
    a(f"s_cmp_lt_u32 s{sCNT}, 8\n s_cbranch_scc1 L_ld_loop")
    other_srds()
    a(f"""
    v_mov_b32 v7, 0
    buffer_load_dwordx2 v[{vN}:{vN+1}], v7, {s(SDBG,4)}, 0 offen sc1
    s_waitcnt vmcnt(11)
    s_barrier                              ; barrier 6
    s_waitcnt vmcnt(1)
    s_barrier                              ; barrier 7
    """)
    TS(2)
    a(f"""
    s_mov_b32 s{sTO}, 0x200000
L_nonce:
    s_waitcnt vmcnt(0)
    v_readfirstlane_b32 s56, v{vN}
    s_nop 3
    s_cmp_lg_u32 s56, 0
    s_cbranch_scc1 L_nonce_ok
    s_sleep 1
    buffer_load_dwordx2 v[{vN}:{vN+1}], v7, {s(SDBG,4)}, 0 offen sc1
    s_sub_u32 s{sTO}, s{sTO}, 1
    s_cmp_lg_u32 s{sTO}, 0
    s_cbranch_scc1 L_nonce
L_nonce_ok:
    s_barrier                              ; barrier 8
    """)
    masks()
    a("s_branch L_join1")

    F = [16, 40]
    XA, XH, WA = 64, 68, 72
    CX, CH, CW = 76, 80, 84
    AQ, AK, AV, AH = 96, 128, 160, 192
    sRP, sHP, sSO, sCC = 60, 61, 62, 63
    a("L_compute:")
    a(f"""
    s_and_b32 s{sRP}, s{sW}, 1
    s_lshr_b32 s{sHP}, s{sW}, 1
    s_cmp_lg_u32 s{sW}, 1
    s_cbranch_scc1 L_nopf
    s_getpc_b64 s[56:57]
    v_lshlrev_b32 v4, 7, v{vL}
    v_mov_b32 v5, s57
    v_add_co_u32 v2, vcc, s56, v4
    v_add_u32 v4, 0x2000, v4
    v_min_u32 v4, CODE_TAIL, v4
    v_addc_co_u32 v3, vcc, 0, v5, vcc
    global_load_dword v{vJ}, v[2:3], off
    v_add_co_u32 v2, vcc, s56, v4
    s_nop 1
    v_addc_co_u32 v3, vcc, 0, v5, vcc
    global_load_dword v{vJ+1}, v[2:3], off
L_nopf:
    s_waitcnt lgkmcnt(0)
    """)
    other_srds()
    a(f"""
    s_or_b32 s56, s2, s{sW}
    s_cmp_lg_u32 s56, 0
    s_cbranch_scc1 L_notag
    v_mov_b32 v2, 0
    s_mov_b32 s56, {WS_EPOCH}
    buffer_load_dwordx2 v[4:5], v2, {s(SWS,4)}, s56 offen sc1
    s_waitcnt vmcnt(0)
    v_readfirstlane_b32 s57, v4
    v_readfirstlane_b32 s58, v5
    s_nop 3
L_tag0:
    s_mul_i32 s57, s57, 0x9e3779b1
    s_add_u32 s57, s57, 0x7f4a7c15
    s_cmp_eq_u32 s57, 0
    s_cbranch_scc1 L_tag0
    s_mul_i32 s58, s58, 0x2c9277b5
    s_add_u32 s58, s58, 0xac564b05
    s_xor_b32 s58, s58, s57
    v_mov_b32 v4, s57
    v_mov_b32 v5, s58
    s_mov_b64 exec, 1
    buffer_store_dwordx2 v[4:5], v2, {s(SDBG,4)}, 0 offen sc1
    buffer_store_dwordx2 v[4:5], v2, {s(SWS,4)}, s56 offen sc1
    s_mov_b64 exec, -1
L_notag:
    """)
    masks()
    a(f"""
    v_and_b32 v2, 31, v{vL}               ; m
    v_lshrrev_b32 v3, 5, v{vL}            ; h
    v_bfe_u32 v4, v{vL}, 1, 3
    v_xor_b32 v4, v4, v3
    v_lshlrev_b32 v4, 4, v4
    s_lshl_b32 s56, s{sRP}, 13
    s_add_u32 s56, s56, {XOFF}
    v_lshl_add_u32 v5, v2, 7, v4
    v_add_u32 v{XA}, s56, v5
    v_and_b32 v5, 15, v{vL}
    v_lshl_add_u32 v5, v5, 7, v4
    v_add_u32 v{XH}, {XOFF + 16384}, v5
    """)
    for ks in range(1, 4):
        a(f"v_xor_b32 v{XA+ks}, {ks<<5}, v{XA}\n v_xor_b32 v{XH+ks}, {ks<<5}, v{XH}")
    a(f"""
    v_bfe_u32 v4, v{vL}, 2, 2             ; i>>2
    v_lshl_add_u32 v4, v3, 3, v4          ; 8h + (i>>2)
    v_lshlrev_b32 v4, 7, v4
    v_bfe_u32 v5, v{vL}, 3, 1
    v_xor_b32 v5, s{sHP}, v5
    v_lshl_add_u32 v4, v5, 6, v4
    v_bfe_u32 v5, v{vL}, 4, 1
    v_lshl_add_u32 v4, v5, 5, v4
    v_and_b32 v5, 3, v{vL}
    v_lshl_add_u32 v{WA}, v5, 3, v4
    """)
    for r in range(AQ, AH + 16):
        a(f"v_mov_b32 v{r}, 0")
    a(f"s_mov_b32 s{sSO}, 0\n s_mov_b32 s{sCC}, 0")

    def frag_reads(fb, ks, halo):
        r = []
        r.append(f"ds_read_b64_tr_b16 {v(fb+12,2)}, v{CW} offset:{ks*2048}")
        r.append(f"ds_read_b64_tr_b16 {v(fb+14,2)}, v{CW} offset:{ks*2048+512}")
        r.append(f"ds_read_b128 {v(fb,4)}, v{CX+ks}")
        r.append(f"ds_read_b128 {v(fb+4,4)}, v{CX+ks} offset:4096")
        for t in (1, 2):
            r.append(f"ds_read_b64_tr_b16 {v(fb+12+4*t,2)}, v{CW} offset:{t*8192+ks*2048}")
            r.append(f"ds_read_b64_tr_b16 {v(fb+14+4*t,2)}, v{CW} offset:{t*8192+ks*2048+512}")
        if halo is not None:
            r.append(f"ds_read_b128 {v(fb+8,4)}, v{CH+ks}")
        return r
    def frag_mfmas(fb, halo):
        x0, x1, xh, wq, wk, wv = fb, fb + 4, fb + 8, fb + 12, fb + 16, fb + 20
        def M(d, A, B): return f"{MFMA} {v(d,16)}, {v(A,4)}, {v(B,4)}, {v(d,16)}"
        m = [M(AQ, wq, x0), M(AQ + 16, wq, x1), M(AK, wk, x0), M(AK + 16, wk, x1), M(AV, x0, wv), M(AV + 16, x1, wv)]
        if halo == 0: m.append(M(AH, wk, xh))
        if halo == 1: m.append(M(AH, xh, wv))
        return m
    def setaddr(halo):
        r = [f"v_add_u32 v{CW}, s{sSO}, v{WA}"]
        for ks in range(4): r.append(f"v_add_u32 v{CX+ks}, s{sSO}, v{XA+ks}")
        if halo is not None:
            for ks in range(4): r.append(f"v_add_u32 v{CH+ks}, s{sSO}, v{XH+ks}")
        return r
    def gemm_loop(halo, tag):
        for l in setaddr(halo): a(l)
        a("s_barrier                       ; barrier 0")
        TS(1)
        for l in frag_reads(F[0], 0, halo): a(l)
        a(f"L_g_{tag}:")
        for ks in range(4):
            cur, nxt = F[ks & 1], F[(ks + 1) & 1]
            a("s_waitcnt lgkmcnt(0)")
            mm = frag_mfmas(cur, halo)
            if ks == 3:
                a(f"""
                s_add_u32 s{sSO}, s{sSO}, {STAGE}
                s_cmp_ge_u32 s{sSO}, {3*STAGE}
                s_cselect_b32 s{sSO}, 0, s{sSO}
                s_barrier
                """)
                a(mm.pop(0))
                for l in setaddr(halo): a(l)
            rd = frag_reads(nxt, (ks + 1) & 3, halo)
            per = 2
            for i, m_ in enumerate(mm):
                a(m_)
                for l in rd[:per]: a(l)
                rd = rd[per:]
            for l in rd: a(l)
        a(f"""
        s_add_u32 s{sCC}, s{sCC}, 1
        s_cmp_lt_u32 s{sCC}, 8
        s_cbranch_scc1 L_g_{tag}
        """)
    a(f"""
    s_cmp_lg_u32 s{sBR}, 0
    s_cbranch_scc1 L_gB
    s_cmp_lg_u32 s{sRP}, 0
    s_cbranch_scc1 L_gA1
    """)
    gemm_loop(0, "a0"); a("s_branch L_gdone\nL_gA1:")
    gemm_loop(1, "a1"); a("s_branch L_gdone\nL_gB:")
    gemm_loop(None, "b"); a("L_gdone:")
    a("s_waitcnt lgkmcnt(0)")
    TS(2)
    PK, PV, PQ, PH = 16, 32, 48, 64
    vA, vB = 72, 73
    a(f"""
    v_lshlrev_b32 v{vA}, 4, v{vL}               ; lane*16
    v_and_b32 v2, 15, v{vL}
    v_lshlrev_b32 v2, 4, v2
    v_lshrrev_b32 v3, 5, v{vL}
    v_lshl_add_u32 v2, v3, 8, v2                ; h*256 + (l&15)*16
    v_bfe_u32 v3, v{vL}, 4, 1
    v_lshl_add_u32 v{vB}, v3, 16, v2
    v_mul_u32_u24 v3, 12288, v3
    v_add_u32 v74, v3, v2
    s_lshl_b32 s56, s{sHG}, 2
    s_lshl_b32 s57, s{sHP}, 1
    s_add_u32 s56, s56, s57
    s_lshl_b32 s56, s56, 6
    s_lshl_b32 s57, s{sRB}, 2
    s_lshl_b32 s58, s{sRP}, 1
    s_add_u32 s57, s57, s58
    s_add_u32 s56, s56, s57
    s_lshl_b32 s56, s56, 10
    s_add_u32 s57, s56, 65536
    s_add_u32 s58, s56, {WS_V}
    s_mov_b32 s59, {f32bits(QSCALE):#x}
    """)
    def pack(dst, src, n):
        for i in range(n):
            a(f"v_cvt_pk_bf16_f32 v{dst+i}, v{src+2*i}, v{src+2*i+1}")
    pack(PK, AK, 16)
    pack(PV, AV, 16)
    a(f"s_cmp_eq_u32 s{sBR}, 0\n s_cbranch_scc1 L_nopub")
    for rg in range(2):
        for e in range(2):
            a(f"buffer_store_dwordx4 {v(PK+8*rg+4*e,4)}, v{vA}, {s(SWS,4)}, s{56+e} offen offset:{rg*1024} sc1")
    for rg in range(2):
        for kh in range(2):
            a(f"buffer_store_dwordx4 {v(PV+8*rg+4*kh,4)}, v{vB}, {s(SWS,4)}, s58 offen offset:{rg*1024+kh*512} sc1")
    a("L_nopub:")
    a(f"""
    s_mul_i32 s56, s{sHP}, {2*12288}
    s_lshl_b32 s57, s{sRP}, 11
    s_add_u32 s57, s57, s56
    s_add_u32 s57, s57, {8*1024}
    v_add_u32 v75, s57, v{vA}
    s_add_u32 s57, s57, {LV}
    v_add_u32 v76, s57, v74
    s_lshl_b32 s57, s{sHP}, 13
    s_lshl_b32 s58, s{sRP}, 11
    s_add_u32 s57, s57, s58
    s_add_u32 s57, s57, {LQ}
    v_add_u32 v77, s57, v{vA}
    """)
    for rg in range(2):
        for e in range(2):
            a(f"ds_write_b128 v75, {v(PK+8*rg+4*e,4)} offset:{e*12288+rg*1024}")
    for rg in range(2):
        for kh in range(2):
            a(f"ds_write_b128 v76, {v(PV+8*rg+4*kh,4)} offset:{rg*1024+kh*512}")
    for r in range(32):
        a(f"v_mul_f32 v{AQ+r}, s59, v{AQ+r}")
    pack(PQ, AQ, 16)
    for rg in range(2):
        for e in range(2):
            a(f"ds_write_b128 v77, {v(PQ+8*rg+4*e,4)} offset:{e*4096+rg*1024}")
    a(f"s_cmp_lg_u32 s{sBR}, 0\n s_cbranch_scc1 L_nohalo_e")
    pack(PH, AH, 8)
    a(f"""
    s_add_u32 s56, s56, {7*1024}
    s_cmp_lg_u32 s{sRP}, 0
    s_cbranch_scc1 L_halo_v
    v_add_u32 v75, s56, v{vA}
    ds_write_b128 v75, {v(PH,4)}
    ds_write_b128 v75, {v(PH+4,4)} offset:12288
    s_branch L_nohalo_e
L_halo_v:
    s_add_u32 s56, s56, {LV}
    v_add_u32 v76, s56, v74
    ds_write_b128 v76, {v(PH+4,4)} offset:512
L_nohalo_e:
    s_waitcnt vmcnt(0) lgkmcnt(0)
L_join1:
    s_barrier                              ; barrier 9
    """)
    TS(3)

    Q, KF, VA, VB, S0, S1, C, O, P = 4, 8, 44, 52, 64, 80, 96, 112, 128
    mA, mB, vT = 136, 137, 138
    vKa, vVa, vQa, vOo = 208, 209, 210, 211
    sHL, sQB, sU, sG, sT0 = 60, 61, 62, 63, 64
    a(f"v_lshlrev_b32 v{vOo}, 4, v{vL}")
    for r in range(VA, VA + 20):
        a(f"v_mov_b32 v{r}, 0x3f803f80")
    a(f"""
    s_lshr_b32 s{sHL}, s{sW}, 1
    s_and_b32 s{sQB}, s{sW}, 1
    s_mov_b32 s{sU}, 0
    v_and_b32 v2, 15, v{vL}
    v_lshlrev_b32 v2, 4, v2
    v_lshrrev_b32 v3, 5, v{vL}
    v_lshl_add_u32 v212, v3, 8, v2
    s_cmp_eq_u32 s{sBR}, 0
    s_cbranch_scc1 L_attA
    """)
    def unit_addr():
        a(f"""
        s_mul_i32 s56, s{sHL}, 12
        s_add_u32 s56, s56, s{sQB}
        s_lshl_b32 s56, s56, 10
        v_add_u32 v{vKa}, s56, v{vOo}
        s_add_u32 s56, s56, {LV}
        v_add_u32 v{vVa}, s56, v212
        s_lshl_b32 s56, s{sHL}, 2
        s_add_u32 s56, s56, s{sQB}
        s_lshl_b32 s56, s56, 10
        s_add_u32 s56, s56, {LQ}
        v_add_u32 v{vQa}, s56, v{vOo}
        s_lshl_b32 s{sG}, s{sRB}, 2
        s_add_u32 s{sG}, s{sG}, s{sQB}
        """)
    def vread(buf, t, khs=(0, 1)):
        a(f"s_mov_b64 exec, s[{sVM}:{sVM+1}]")
        for i, kh in enumerate(khs):
            a(f"ds_read_b128 {v(buf+4*i,4)}, v{vVa} offset:{t*1024+kh*512}")
        a("s_mov_b64 exec, -1")
    def rowmax_finish():
        a(f"""
        v_max_f32 v{mA}, v{mA}, v{mB}
        v_mov_b32 v{mB}, v{mA}
        s_nop 1
        v_permlane32_swap_b32 v{mA}, v{mB}
        s_nop 1
        v_max_f32 v{mA}, v{mA}, v{mB}
        """)
    def finish_unit(ws_o, nextq, lbl):
        a(f"""
        s_nop 7
        s_nop 3
        v_rcp_f32 v{vT}, v{O+8}
        s_lshl_b32 s56, s{sG}, 5
        s_lshl_b32 s57, s{sHG}, 2
        s_add_u32 s56, s56, s57
        s_add_u32 s56, s56, s{sHL}
        s_lshl_b32 s56, s56, 10
        s_add_u32 s56, s56, {ws_o}
        """)
        for r in range(8):
            a(f"v_mul_f32 v{O+r}, v{vT}, v{O+r}")
        pack(P, O, 4)
        a(f"""
        buffer_store_dwordx4 {v(P,4)}, v{vOo}, {s(SWS,4)}, s56 offen sc1
        s_sub_u32 s{sQB}, 3, s{sQB}
        s_add_u32 s{sU}, s{sU}, 1
        s_cmp_lt_u32 s{sU}, 2
        s_cbranch_scc1 {lbl}
        """)
    a(f"""
    s_cmp_lg_u32 s{sW}, 4
    s_cbranch_scc1 L_kvwait
    s_lshl_b32 s56, s{sRB}, 3
    s_add_u32 s56, s56, s{sHG}
    s_lshl_b32 s56, s56, 7
    s_add_u32 s56, s56, {WS_FKV}
    """)
    setflag(56)
    a(f"""
    s_cmp_eq_u32 s{sRB}, 0
    s_cbranch_scc1 L_kvwait
    s_sub_u32 s57, s56, 1024
    s_cmp_ge_u32 s{sRB}, 2
    s_cselect_b32 s58, 1024, 0
    v_and_b32 v4, 1, v{vL}
    v_mul_u32_u24 v4, s58, v4
    v_sub_u32 v4, s57, v4
    """)
    poll(4, "L_pkv")
    a(f"""
L_kvwait:
    s_barrier                              ; barrier 10
    """)
    TS(4)
    a(f"""
    s_cmp_eq_u32 s{sRB}, 0
    s_cbranch_scc1 L_kvdone
    s_lshl_b32 s56, s{sHG}, 2
    s_add_u32 s56, s56, s{sHL}
    s_lshl_b32 s56, s56, 6
    s_lshl_b32 s57, s{sRB}, 2
    s_add_u32 s56, s56, s57
    s_sub_u32 s56, s56, 4
    s_lshl_b32 s56, s56, 10
    s_lshl_b32 s57, s{sQB}, 21
    s_add_u32 s56, s56, s57
    s_mul_i32 s57, s{sQB}, {LV}
    s_mul_i32 s58, s{sHL}, 12288
    s_add_u32 s57, s57, s58
    s_add_u32 m0, s57, 4096
    s_nop 0
    """)
    for i in range(4):
        a(f"buffer_load_dwordx4 v{vOo}, {s(SWS,4)}, s56 offen offset:{i*1024} sc1 lds")
    a(f"""
    s_cmp_eq_u32 s{sRB}, 1
    s_cbranch_scc1 L_kvdone
    s_mov_b32 m0, s57
    s_sub_u32 s56, s56, 4096
    """)
    for i in range(4):
        a(f"buffer_load_dwordx4 v{vOo}, {s(SWS,4)}, s56 offen offset:{i*1024} sc1 lds")
    a(f"""
L_kvdone:
    s_waitcnt vmcnt(0)
    s_barrier                              ; barrier 11
    """)
    TS(5)
    a("L_unitB:")
    unit_addr()
    a(f"""
    s_sub_u32 s{sT0}, 8, s{sG}
    s_cselect_b32 s{sT0}, 0, s{sT0}
    ds_read_b128 {v(Q,4)}, v{vQa}
    """)
    for t in range(8, -1, -1):
        a(f"ds_read_b128 {v(KF+4*t,4)}, v{vKa} offset:{t*1024}")
    vread(VA, 8)
    a("s_waitcnt lgkmcnt(2)")
    SS = [S0, S1]
    mfma(S0, KF + 32, Q, M1)
    for t in range(8, -1, -1):
        cur, nxt = SS[t & 1], SS[(t + 1) & 1]
        if t > 0: mfma(nxt, KF + 4 * (t - 1), Q, M2 if t == 1 else None)
        if t == 8:
            a("s_nop 7\n s_nop 2")
            a(f"v_max_f32 v{mA}, v{cur}, v{cur+1}\n v_max_f32 v{mB}, v{cur+2}, v{cur+3}")
            rs = range(4, 16, 2)
        else:
            if t == 0: a("s_nop 1")
            rs = range(0, 16, 2)
        for i, r in enumerate(rs):
            m = mA if i & 1 == 0 else mB
            a(f"v_max3_f32 v{m}, v{cur+r}, v{cur+r+1}, v{m}")
        if t > 0:
            a(f"s_cmp_eq_u32 s{sT0}, {t}\n s_cbranch_scc1 L_p1done")
            a("s_nop 0")
    a("L_p1done:")
    rowmax_finish()
    for r in range(16):
        a(f"v_sub_f32 v{S0+r}, v{M1+r}, v{mA}")
    for r in range(16):
        a(f"v_sub_f32 v{C+r}, 0, v{mA}")
        if r == 1: mfma(S0, KF + 32, Q, S0)
    a("s_nop 1")
    VV = [VA, VB]
    for t in range(8, -1, -1):
        cur, nxt = SS[t & 1], SS[(t + 1) & 1]
        vc, vn = VV[t & 1], VV[(t + 1) & 1]
        if t == 1:
            for r in range(16):
                a(f"v_sub_f32 v{nxt+r}, v{M2+r}, v{mA}")
            a("s_nop 1")
            mfma(nxt, KF, Q, nxt)
        elif t > 0:
            mfma(nxt, KF + 4 * (t - 1), Q, C)
        if t > 0: vread(vn, t - 1)
        for half in range(2):
            for r in range(8):
                a(f"v_exp_f32 v{cur+8*half+r}, v{cur+8*half+r}")
            pack(P + 4 * half, cur + 8 * half, 4)
            if half == 0:
                a(f"s_waitcnt lgkmcnt({2 if t > 0 else 0})")
                a("s_nop 0")
            else:
                a("s_nop 1")
            mfma(O, vc + 4 * half, P + 4 * half, None if (t == 8 and half == 0) else O)
        if t > 0:
            a(f"s_cmp_eq_u32 s{sT0}, {t}\n s_cbranch_scc1 L_p2done")
    a("L_p2done:\n s_waitcnt lgkmcnt(0)")
    finish_unit(WS_OB, None, "L_unitB")
    a("s_branch L_attdone")
    a("L_attA:\nL_unitA:")
    unit_addr()
    a(f"""
    ds_read_b128 {v(Q,4)}, v{vQa}
    ds_read_b128 {v(KF,4)}, v{vKa} offset:8192
    ds_read_b128 {v(KF+4,4)}, v{vKa} offset:7168
    """)
    vread(VA, 8)
    vread(VB, 7, khs=(1,))
    a("s_waitcnt lgkmcnt(3)")
    mfma(S0, KF, Q, M1)
    mfma(S1, KF + 4, Q, M2)
    a(f"""
    s_nop 7
    s_nop 3
    s_cmp_eq_u32 s{sG}, 0
    s_cbranch_scc1 L_noprev
    """)
    for r in range(8, 16):
        a(f"v_max_f32 v{S0+r}, v{S0+r}, v{S1+r}")
    a("L_noprev:")
    a(f"v_max_f32 v{mA}, v{S0}, v{S0+1}\n v_max_f32 v{mB}, v{S0+2}, v{S0+3}")
    for i, r in enumerate(range(4, 16, 2)):
        m = mA if i & 1 == 0 else mB
        a(f"v_max3_f32 v{m}, v{S0+r}, v{S0+r+1}, v{m}")
    rowmax_finish()
    for r in range(16):
        a(f"v_sub_f32 v{S0+r}, v{S0+r}, v{mA}")
    for r in range(16):
        a(f"v_exp_f32 v{S0+r}, v{S0+r}")
    pack(P, S0, 8)
    a(f"s_mov_b64 vcc, s[{sVM}:{sVM+1}]")
    for r in range(4):
        a(f"v_cndmask_b32 v{C+r}, 0, v{P+4+r}, vcc")
    for r in range(4):
        a(f"v_xor_b32 v{P+4+r}, v{C+r}, v{P+4+r}")
    a("s_waitcnt lgkmcnt(0)")
    mfma(O, VA, P, None)
    mfma(O, VB, C, O)
    mfma(O, VA + 4, P + 4, O)
    finish_unit(WS_OA, None, "L_unitA")
    a("L_attdone:")
    TS(6)
    a(f"""
    s_waitcnt vmcnt(0)
    s_barrier                              ; barrier 12
    s_cmp_lg_u32 s{sW}, 4
    s_cbranch_scc1 L_nof2
    s_lshl_b32 s56, s{sBR}, 4
    s_add_u32 s56, s56, s{sRB}
    s_lshl_b32 s56, s56, 4
    s_add_u32 s56, s56, s{sHG}
    s_lshl_b32 s56, s56, 3
    s_add_u32 s56, s56, {WS_FO}
    """)
    setflag(56)
    a("L_nof2:")

    WF, ACC, OF = 64, 192, 8
    vWo, vTr, vOf, vOut = 40, 41, 42, 43
    sRT, sCT = 60, 61
    a(f"""
    v_lshrrev_b32 v2, 3, v{vL}
    v_and_b32 v3, 7, v{vL}
    v_bfe_u32 v4, v{vL}, 4, 1
    v_lshlrev_b32 v4, 2, v4
    v_xor_b32 v3, v3, v4
    v_lshlrev_b32 v3, 4, v3
    v_lshl_add_u32 v{vWo}, v2, 10, v3
    v_lshrrev_b32 v3, 5, v{vL}                  ; h
    v_bfe_u32 v4, v{vL}, 2, 2
    v_lshl_add_u32 v4, v3, 2, v4                ; 4h + (i>>2)
    v_lshlrev_b32 v4, 7, v4
    v_bfe_u32 v5, v{vL}, 3, 1
    s_bfe_u32 s56, s{sW}, 0x10001               ; ch = (w>>1)&1
    v_xor_b32 v5, s56, v5
    v_lshl_add_u32 v4, v5, 6, v4
    v_bfe_u32 v5, v{vL}, 4, 1
    v_lshl_add_u32 v4, v5, 5, v4
    v_and_b32 v5, 3, v{vL}
    v_lshl_add_u32 v{vTr}, v5, 3, v4
    s_and_b32 s56, s{sW}, 1
    s_lshl_b32 s56, s56, 15
    v_add_u32 v{vOf}, s56, v{vOo}
    v_and_b32 v4, 31, v{vL}
    v_lshlrev_b32 v4, 11, v4
    v_lshl_add_u32 v{vOut}, v3, 4, v4           ; row*2048 + h*16
    s_mov_b32 s{SWO+2}, {512*1024}
    s_mov_b32 s{SWO+3}, 0x20000
    """)
    def dma_wo(colblk_reg, ldsbase):
        a(f"""
        s_lshl_b32 s56, s{sW}, 16
        s_lshl_b32 s57, s{colblk_reg}, 7
        s_add_u32 s56, s56, s57
        s_lshl_b32 s57, s{sW}, 13
        """)
        for i in range(8):
            a(f"""
            s_add_u32 m0, s57, {ldsbase + i*1024}
            s_add_u32 s58, s56, {i*8192}
            buffer_load_dwordx4 v{vWo}, {s(SWO,4)}, s58 offen lds
            """)
    def dma_o(ws_o):
        a(f"""
        s_lshl_b32 s56, s{sRT}, 16
        s_lshl_b32 s57, s{sW}, 13
        s_add_u32 s56, s56, s57
        s_add_u32 s56, s56, {ws_o}
        s_mov_b32 m0, s57
        s_nop 0
        """)
        for i in range(4):
            a(f"buffer_load_dwordx4 v{vOo}, {s(SWS,4)}, s56 offen offset:{i*1024} sc1 lds")
        a(f"s_add_u32 m0, s57, 4096\n s_add_u32 s56, s56, 4096")
        for i in range(4):
            a(f"buffer_load_dwordx4 v{vOo}, {s(SWS,4)}, s56 offen offset:{i*1024} sc1 lds")
    def read_wo(addr):
        for hd in range(32):
            a(f"ds_read_b64_tr_b16 {v(WF+4*hd,2)}, v{addr} offset:{hd*2048}")
            a(f"ds_read_b64_tr_b16 {v(WF+4*hd+2,2)}, v{addr} offset:{hd*2048+1024}")
        a("s_waitcnt lgkmcnt(0)")
    def poll_o(br, lbl):
        a(f"""
        s_cmp_lg_u32 s{sW}, 4
        s_cbranch_scc1 {lbl}_skip
        s_lshr_b32 s56, s{sRT}, 1
        s_lshl_b32 s56, s56, 7
        s_add_u32 s56, s56, {WS_FO + br*2048}
        v_and_b32 v4, 7, v{vL}
        v_lshlrev_b32 v4, 3, v4
        v_add_u32 v4, s56, v4
        """)
        poll(4, lbl)
        a(f"{lbl}_skip:")
    def proj_mm(colbyte_reg):
        for i in range(8):
            a(f"ds_read_b128 {v(OF+4*i,4)}, v{vOf} offset:{i*1024}")
        for hd in range(32):
            a(f"s_waitcnt lgkmcnt({min(7, 31-hd)})")
            mfma(ACC, WF + 4 * hd, OF + 4 * (hd & 7), None if hd == 0 else ACC)
            if hd + 8 < 32:
                a(f"ds_read_b128 {v(OF+4*(hd&7),4)}, v{vOf} offset:{(hd+8)*1024}")
        a(f"""
        s_lshl_b32 s56, s{sRT}, 1
        s_and_b32 s57, s{sW}, 1
        s_add_u32 s56, s56, s57
        s_lshl_b32 s56, s56, 16
        s_add_u32 s56, s56, s{colbyte_reg}
        s_nop 6
        """)
        pack(OF, ACC, 8)
        a(f"""
        s_nop 1
        v_permlane32_swap_b32 v{OF}, v{OF+2}
        v_permlane32_swap_b32 v{OF+1}, v{OF+3}
        v_permlane32_swap_b32 v{OF+4}, v{OF+6}
        v_permlane32_swap_b32 v{OF+5}, v{OF+7}
        buffer_store_dwordx4 {v(OF,4)}, v{vOut}, {s(SOUT,4)}, s56 offen
        buffer_store_dwordx4 {v(OF+4,4)}, v{vOut}, {s(SOUT,4)}, s56 offen offset:32
        """)
    a(f"""
    s_cmp_lg_u32 s{sBR}, 0
    s_cbranch_scc1 L_projB_pre
    s_lshr_b32 s56, s{sXCD}, 1
    s_lshl_b32 s56, s56, 3
    s_and_b32 s{sRT}, s{sIDX}, 7
    s_add_u32 s{sRT}, s{sRT}, s56
    s_lshr_b32 s{sCT}, s{sIDX}, 3
    s_lshl_b32 s{sCT}, s{sCT}, 1
    s_mov_b32 s{SWO}, s20
    s_mov_b32 s{SWO+1}, s21
    """)
    dma_wo(sCT, 0)
    a(f"s_add_u32 s62, s{sCT}, 1")
    dma_wo(62, 65536)
    a(f"""
    s_lshr_b32 s56, s{sW}, 2
    s_lshl_b32 s56, s56, 16
    v_add_u32 v44, s56, v{vTr}
    s_waitcnt vmcnt(0)
    s_barrier
    """)
    read_wo(44)
    TS(7)
    poll_o(0, "L_poa")
    a("s_barrier")
    TS(8)
    dma_o(WS_OA)
    a(f"""
    s_mov_b32 s{SWO}, s26
    s_mov_b32 s{SWO+1}, s27
    s_lshr_b32 s62, s{sIDX}, 2
    """)
    dma_wo(62, 65536)
    a(f"""
    s_lshl_b32 s62, s{sCT}, 7
    s_lshr_b32 s56, s{sW}, 1
    s_lshl_b32 s56, s56, 6
    s_add_u32 s62, s62, s56
    s_waitcnt vmcnt(8)
    s_barrier
    """)
    proj_mm(62)
    a(f"""
    s_branch L_projB
L_projB_pre:
    s_mov_b32 s{SWO}, s26
    s_mov_b32 s{SWO+1}, s27
    s_lshr_b32 s62, s{sIDX}, 2
    """)
    dma_wo(62, 65536)
    a(f"""
L_projB:
    s_lshl_b32 s{sRT}, s{sXCD}, 2
    s_and_b32 s56, s{sIDX}, 3
    s_add_u32 s{sRT}, s{sRT}, s56
    v_add_u32 v44, 0x10000, v{vTr}
    s_waitcnt vmcnt(0)
    s_barrier
    s_cmp_ge_u32 s{sW}, 4
    s_cbranch_scc1 L_nowo
    """)
    read_wo(44)
    a("L_nowo:")
    TS(9)
    poll_o(1, "L_pob")
    a("s_barrier")
    TS(10)
    dma_o(WS_OB)
    a(f"""
    s_lshr_b32 s62, s{sIDX}, 2
    s_lshl_b32 s62, s62, 7
    s_lshr_b32 s56, s{sW}, 1
    s_lshl_b32 s56, s56, 6
    s_add_u32 s62, s62, s56
    s_add_u32 s62, s62, 1024
    s_waitcnt vmcnt(0)
    s_barrier
    s_cmp_ge_u32 s{sW}, 4
    s_cbranch_scc1 L_fin
    """)
    proj_mm(62)
    a("L_fin:")
    if diag:
        a(f"""
        s_waitcnt vmcnt(0)
        s_memtime s[76:77]
        s_and_b32 s56, s{sW}, 3
        s_cmp_lg_u32 s56, 0
        s_cbranch_scc1 L_end
        s_waitcnt lgkmcnt(0)
        s_lshl_b32 s56, s2, 1
        s_lshr_b32 s57, s{sW}, 2
        s_add_u32 s56, s56, s57
        s_lshl_b32 s56, s56, 6
        s_add_u32 s56, s56, {WS_TS}
        v_mov_b32 v2, 0
        v_mov_b32 v8, s78
        """)
        for k in range(1, 11):
            a(f"s_sub_u32 s57, s{80+2*k}, s80\n v_mov_b32 v{8+k}, s57")
        a(f"""
        s_sub_u32 s57, s76, s80
        v_mov_b32 v19, s57
        s_mov_b64 exec, 1
        buffer_store_dwordx4 v[8:11], v2, {s(SWS,4)}, s56 offen
        buffer_store_dwordx4 v[12:15], v2, {s(SWS,4)}, s56 offen offset:16
        buffer_store_dwordx4 v[16:19], v2, {s(SWS,4)}, s56 offen offset:32
        """)
    a("L_end:\n s_endpgm")
    txt = a.text()
    txt = "\n".join(l.strip() if not l.strip().endswith(":") and not l.startswith(";") and not l.startswith(".") else l.strip() for l in txt.split("\n"))
    return txt + kernel_desc(NAME, vgpr=256, sgpr=102)

def code_size(txt):
    import subprocess
    open("_g.s", "w").write(txt.replace("CODE_TAIL", "0x1234"))
    subprocess.run(["clang", "-x", "assembler", "-target", "amdgcn-amd-amdhsa", "-mcpu=gfx950", "-c", "_g.s", "-o", "_g.o"], check=True)
    out = subprocess.run(["llvm-objdump", "-d", "--mcpu=gfx950", "_g.o"], capture_output=True, text=True).stdout
    import re
    addrs = [(int(m.group(1), 16), l) for l in out.split("\n") for m in [re.search(r"// ([0-9A-F]{12}):", l)] if m]
    pc = [x for x, l in addrs if "s_getpc" in l][0] + 4
    return pc, addrs[-1][0] + 4

def finalize(txt):
    pc, end = code_size(txt)
    assert 0x2000 <= end - pc <= 0x4000, (pc, end)
    return txt.replace("CODE_TAIL", hex(end - pc - 4)), end

if __name__ == "__main__":
    for diag, fn in ((False, "concat_heads__sliding_local_dilated__sliding_block__prompt.s"), (True, "k_diag.s")):
        t, size = finalize(gen(diag))
        errs = hazard.check(t)
        open(fn, "w").write(t)
        print(fn, "code bytes", size, "hazards", len(errs))
```
